```python
import torch

def _softmax(x, axis=-1):
    return torch.softmax(x, dim=axis)
def _gelu(x):
    return torch.nn.functional.gelu(x, approximate="tanh")
def _silu(x):
    return torch.nn.functional.silu(x)
def _sigmoid(x):
    return torch.sigmoid(x)
def _layernorm(x, axis=-1, eps=1e-5):
    m = x.mean(dim=axis, keepdim=True)
    v = x.var(dim=axis, keepdim=True, unbiased=False)
    return (x - m) / torch.sqrt(v + eps)
def _scatter_add(tgt, idx, src, axis=0):
    return tgt.clone().index_add_(axis, idx, src)
def _segment_sum(src, seg, n):
    out = torch.zeros((n,) + src.shape[1:], dtype=src.dtype)
    return out.index_add_(0, seg, src)
def _pad(x, pw):
    flat = tuple(v for pair in reversed(pw) for v in pair)
    return torch.nn.functional.pad(x, flat)

kernel_name = 'interleave_layers__sliding_block_cached__mixer_channel_mlp__decode'

def setup_inputs():

    _w = (lambda a: (lambda t: t.to(torch.bfloat16) if t.is_floating_point() else t)(torch.as_tensor(a)))
    def _A_setup():
        B, Sq, D = 8, 1, 640
        Hq, Hkv, Sk, Dh = 32, 32, 4096, 128
        assert Hq % Hkv == 0, (Hq, Hkv)
        return {
            "x": _w((lambda *s: torch.randn(*s, dtype=torch.bfloat16) * 0.05)(B, Sq, D)),
            "k_cache": _w((lambda *s: torch.randn(*s, dtype=torch.bfloat16) * 3.2)(B, Hkv, Sk, Dh)),
            "v_cache": _w((lambda *s: torch.randn(*s, dtype=torch.bfloat16) * 0.4)(B, Hkv, Sk, Dh)),
            "wq": _w((lambda *s: torch.randn(*s, dtype=torch.bfloat16) * 3.2)(D, Hq * Dh) * (D ** -0.5)),
            "wo": _w((lambda *s: torch.randn(*s, dtype=torch.bfloat16) * 0.4)(Hq * Dh, D) * ((Hq * Dh) ** -0.5)),
        }
    _A_in = _A_setup()

    def _B_setup():
        B, S, D, F = 8, 1, 640, 1728
        return {
            "x": _w((lambda *s: torch.randn(*s, dtype=torch.bfloat16) * 0.05)(B, S, D)),
            "w1": _w((lambda *s: torch.randn(*s, dtype=torch.bfloat16) * 1.6)(D, F) * (D ** -0.5)),
            "b1": _w((lambda *s: torch.randn(*s, dtype=torch.bfloat16) * 1.6)(F)),
            "w2": _w((lambda *s: torch.randn(*s, dtype=torch.bfloat16) * 0.1)(F, D) * (F ** -0.5)),
            "b2": _w((lambda *s: torch.randn(*s, dtype=torch.bfloat16) * 0.1)(D)),
        }
    _B_in = _B_setup()

    return {
        "A_x": _A_in["x"],
        "A_k_cache": _A_in["k_cache"],
        "A_v_cache": _A_in["v_cache"],
        "A_wq": _A_in["wq"],
        "A_wo": _A_in["wo"],
        "B_x": _B_in["x"],
        "B_w1": _B_in["w1"],
        "B_b1": _B_in["b1"],
        "B_w2": _B_in["w2"],
        "B_b2": _B_in["b2"],
    }

def reference(A_x, A_k_cache, A_v_cache, A_wq, A_wo, B_x, B_w1, B_b1, B_w2, B_b2):
    def _A_ref(x, k_cache, v_cache, wq, wo):
        B, Sq, D = x.shape
        Hq, Dh = 32, 128
        Hkv, Sk = k_cache.shape[1], k_cache.shape[2]
        W = min(4096, max(256, Sk // 4))
        rep = Hq // Hkv
        q = (lambda x, *d: x.permute(*d))((x @ wq).reshape(B, Sq, Hq, Dh), 0, 2, 1, 3)
        k = (lambda x, n, axis: torch.repeat_interleave(x, n, dim=axis))(k_cache[:, :, Sk - W:, :], rep, axis=1)
        v = (lambda x, n, axis: torch.repeat_interleave(x, n, dim=axis))(v_cache[:, :, Sk - W:, :], rep, axis=1)
        scores = torch.einsum("bhqd,bhkd->bhqk", q, k) * (Dh ** -0.5)
        p = _softmax(scores, axis=-1)
        o = torch.einsum("bhqk,bhkd->bhqd", p, v)
        return (lambda x, *d: x.permute(*d))(o, 0, 2, 1, 3).reshape(B, Sq, Hq * Dh) @ wo

    def _B_ref(x, w1, b1, w2, b2):
        y = _layernorm(x, axis=-1)
        h = _gelu(torch.einsum("bsd,df->bsf", y, w1) + b1)
        return torch.einsum("bsf,fd->bsd", h, w2) + b2

    x = A_x
    x = x + _A_ref(_layernorm(x, axis=-1), A_k_cache, A_v_cache, A_wq, A_wo)
    x = x + _B_ref(_layernorm(x, axis=-1), B_w1, B_b1, B_w2, B_b2)
    x = x + _A_ref(_layernorm(x, axis=-1), A_k_cache, A_v_cache, A_wq, A_wo)
    x = x + _B_ref(_layernorm(x, axis=-1), B_w1, B_b1, B_w2, B_b2)
    return x
```

```python
import sys, os
from asmlib import *

NAME = "interleave_layers__sliding_block_cached__mixer_channel_mlp__decode_kernel"

MB_Q  = 0x00000
MB_O  = 0x10000
MB_PA = 0x20000
MB_PB = 0x48000
MB_X1 = 0x70000
MB_X2 = 0x84000
MB_H  = 0x98000
MB_IT = 0xA0000
MB_SIZE = 2 * MB_IT
OOB = 0x7FFF0000
STAMP_OFF = 0x4000000

WREG = 36864
KL_OFF = 32768
SB = 0
WBASE = 16384
L_Y = SB
YP = 1296
L_RED = SB + 10368
L_SMX = SB + 14464
L_XS = SB + 14528
L_B2 = SB + 15040
L_B1 = SB + 15552
LDS_SIZE = 163840
SLOT_WQ, SLOT_R1, SLOT_R2 = 14, 19, 27

V_WQ, V_R1, V_R2, V_V = 72, 92, 124, 144
def vreg_V(m, d):
    i = m * 8 + d
    if i < 28: return ("v", V_V + 4 * i)
    return ("a", 240 + 4 * (i - 28))
def rr(t, r, n): return f"{t}[{r}:{r+n-1}]"

S_X, S_J, S_W, S_H, S_B = 3, 4, 5, 6, 7
SRD_K, SRD_V, SRD_MB, SRD_A, SRD_B, SRD_C = 8, 12, 16, 20, 24, 28
S_KOFF, S_VOFF, S_WB, S_IT, S_ITN, S_LOCAL, S_CNT, S_XCC = 32, 33, 34, 35, 36, 37, 38, 39
S_T0, S_T1, S_T2, S_T3 = 40, 41, 42, 43
S_MASK = 44
S_MG1, S_MG2, S_MG3, S_MN8 = 46, 48, 50, 52
S_ONES, S_SELLO, S_SELHI = 54, 55, 56
S_OK = 57
S_O1, S_O2, S_O3 = 58, 59, 60
S_WOOB = 61
SRD_DBG = 96
P_X, P_K, P_V, P_WQ, P_WO, P_BX, P_W1, P_B1, P_W2, P_B2, P_OUT, P_DBG, P_WS = [64 + 2 * i for i in range(13)]
S_ST = 90
def srd(r): return f"s[{r}:{r+3}]"
def sp(r): return f"s[{r}:{r+1}]"

POLL_MAX = 400000

class Gen:
    def __init__(self, stamps=False, opts=None):
        self.a = Asm()
        self.nvm = 0
        self.stream = []
        self.pos = {}
        self.stamps = stamps
        self.nstamp = 0
        self.opts = opts or {}
    def vm(self, line, tag=None):
        self.a(line)
        if tag is not None: self.pos[tag] = self.nvm
        self.nvm += 1
    def wait_tag(self, tag):
        n = self.nvm - self.pos[tag] - 1
        self.a(f"s_waitcnt vmcnt({min(n, 63)})")
    def S(self, k=1):
        for _ in range(k):
            if not self.stream: return
            item = self.stream.pop(0)
            item(self)
    def stamp(self, idx):
        if not self.stamps: return
        a = self.a
        a("s_memrealtime s[100:101]")
        a("s_waitcnt lgkmcnt(0)")
        a(f"v_writelane_b32 v7, s100, {idx}")
    def mk_srd(self, r, plo, size, off_s=None):
        a = self.a
        if off_s is None:
            a(f"s_mov_b32 s{r}, s{plo}")
            a(f"s_mov_b32 s{r+1}, s{plo+1}")
        else:
            a(f"s_add_u32 s{r}, s{plo}, s{off_s}")
            a(f"s_addc_u32 s{r+1}, s{plo+1}, 0")
        a(f"s_mov_b32 s{r+2}, {size}")
        a(f"s_mov_b32 s{r+3}, 0x20000")
    def publish(self, kind, vdata, vaddr, soff, n, force_global=False):
        a = self.a
        op = {1: "buffer_store_dword", 2: "buffer_store_dwordx2", 4: "buffer_store_dwordx4"}[n]
        d = f"v{vdata}" if n == 1 else rr("v", vdata, n)
        if force_global:
            a(f"{op} {d}, v{vaddr}, {srd(SRD_MB)}, s{soff} offen sc1")
            return
        l1 = a.newlabel("Lpl"); l2 = a.newlabel("Lpe")
        a(f"s_cmp_eq_u32 s{S_LOCAL}, 1")
        a(f"s_cbranch_scc1 {l1}")
        a(f"{op} {d}, v{vaddr}, {srd(SRD_MB)}, s{soff} offen sc1")
        a(f"s_branch {l2}")
        a.label(l1)
        a(f"{op} {d}, v{vaddr}, {srd(SRD_MB)}, s{soff} offen")
        a.label(l2)
    def poll(self, loads, vtmp):
        a = self.a
        lq = a.newlabel("Lpoll")
        a(f"s_mov_b32 s{S_CNT}, 0")
        a.label(lq)
        regs = []
        for (n, vd, va, so, imm) in loads:
            op = {1: "buffer_load_dword", 2: "buffer_load_dwordx2", 4: "buffer_load_dwordx4"}[n]
            d = f"v{vd}" if n == 1 else rr("v", vd, n)
            a(f"{op} {d}, v{va}, {srd(SRD_MB)}, s{so} offen offset:{imm} sc1")
            regs += list(range(vd, vd + n))
        a(f"s_add_u32 s{S_CNT}, s{S_CNT}, 1")
        a(f"s_cmp_gt_u32 s{S_CNT}, {POLL_MAX}")
        a("s_cbranch_scc1 L_abort")
        a("s_waitcnt vmcnt(0)")
        self.check_valid(regs, vtmp)
        a(f"s_cbranch_vccnz {lq}")
    def check_valid(self, regs, vtmp):
        a = self.a
        r = list(regs)
        if len(r) == 1:
            a(f"v_cmp_eq_u32 vcc, -1, v{r[0]}")
            return
        if len(r) == 2:
            a(f"v_max_u32 v{vtmp}, v{r[0]}, v{r[1]}")
            r = []
        else:
            a(f"v_max3_u32 v{vtmp}, v{r[0]}, v{r[1]}, v{r[2]}")
            r = r[3:]
        while len(r) >= 2:
            a(f"v_max3_u32 v{vtmp}, v{vtmp}, v{r[0]}, v{r[1]}")
            r = r[2:]
        if r:
            a(f"v_max_u32 v{vtmp}, v{vtmp}, v{r[0]}")
        a(f"v_cmp_eq_u32 vcc, -1, v{vtmp}")

    def ln_stats_init(self, xr, s1, s2):
        a = self.a
        for k in range(10):
            c1 = "0" if k == 0 else f"v{s1}"
            c2 = "0" if k == 0 else f"v{s2}"
            a(f"v_dot2_f32_bf16 v{s1}, v{xr+k}, s{S_ONES}, {c1}")
            a(f"v_dot2_f32_bf16 v{s2}, v{xr+k}, v{xr+k}, {c2}")
            if k % 3 == 2: self.S()
    def ln_finish(self, xr, t, next_stats):
        a = self.a
        s1, s2 = t, t + 1
        a("s_nop 2")
        for ctl in ("quad_perm:[1,0,3,2]", "quad_perm:[2,3,0,1]", "row_half_mirror", "row_mirror"):
            a(f"v_add_f32_dpp v{s1}, v{s1}, v{s1} {ctl} row_mask:0xf bank_mask:0xf")
            a(f"v_add_f32_dpp v{s2}, v{s2}, v{s2} {ctl} row_mask:0xf bank_mask:0xf")
            a("s_nop 0")
        a(f"v_mov_b32 v{t+2}, v{s1}")
        a(f"v_mov_b32 v{t+3}, v{s2}")
        a("s_nop 0")
        a(f"v_permlane16_swap_b32 v{s1}, v{t+2}")
        a(f"v_permlane16_swap_b32 v{s2}, v{t+3}")
        a("s_nop 0")
        a(f"v_add_f32 v{s1}, v{s1}, v{t+2}")
        a(f"v_add_f32 v{s2}, v{s2}, v{t+3}")
        a(f"v_mul_f32 v{s1}, 0x3acccccd, v{s1}")
        a(f"v_mul_f32 v{s2}, 0x3acccccd, v{s2}")
        a(f"v_fma_f32 v{s2}, -v{s1}, v{s1}, v{s2}")
        a(f"v_max_f32 v{s2}, 0, v{s2}")
        a(f"v_cvt_pk_bf16_f32 v{t+2}, v{s1}, v{s2}")
        a(f"v_and_b32 v{t+3}, 0xffff0000, v{t+2}")
        a(f"v_lshlrev_b32 v{t+4}, 16, v{t+2}")
        a(f"v_add_f32 v{t+3}, 0x3727c5ac, v{t+3}")
        a(f"v_xor_b32 v{t+4}, 0x80000000, v{t+4}")
        a(f"v_cvt_pk_bf16_f32 v{t+3}, v{t+3}, v{t+3}")
        a(f"v_and_b32 v{t+3}, 0xffff0000, v{t+3}")
        a(f"v_sqrt_f32 v{t+3}, v{t+3}")
        a("s_nop 0")
        a(f"v_cvt_pk_bf16_f32 v{t+3}, v{t+3}, v{t+3}")
        a(f"v_and_b32 v{t+3}, 0xffff0000, v{t+3}")
        a(f"v_rcp_f32 v{t+5}, v{t+3}")
        self.S()
        P = [t + 6, t + 8, t + 10, t + 12]
        def A(k):
            p = P[k % 4]
            a(f"v_dot2_f32_bf16 v{p}, v{xr+k}, s{S_SELLO}, v{t+4}")
            a(f"v_dot2_f32_bf16 v{p+1}, v{xr+k}, s{S_SELHI}, v{t+4}")
        def B(k):
            p = P[k % 4]
            a(f"v_cvt_pk_bf16_f32 v{xr+k}, v{p}, v{p+1}")
        def C(k):
            p = P[k % 4]
            a(f"v_lshlrev_b32 v{p}, 16, v{xr+k}")
            a(f"v_and_b32 v{p+1}, 0xffff0000, v{xr+k}")
        def Dm(k):
            p = P[k % 4]
            a(f"v_pk_mul_f32 v[{p}:{p+1}], v[{p}:{p+1}], v[{t+4}:{t+5}] op_sel:[0,1] op_sel_hi:[1,1]")
        def E(k):
            p = P[k % 4]
            a(f"v_cvt_pk_bf16_f32 v{xr+k}, v{p}, v{p+1}")
        def Fs(k):
            if not next_stats: return
            c1 = "0" if k == 0 else f"v{s1}"
            c2 = "0" if k == 0 else f"v{s2}"
            a(f"v_dot2_f32_bf16 v{s1}, v{xr+k}, s{S_ONES}, {c1}")
            a(f"v_dot2_f32_bf16 v{s2}, v{xr+k}, v{xr+k}, {c2}")
        A(0); A(1)
        for k in range(10):
            if k + 2 < 10: A(k + 2)
            else: a("s_nop 1")
            B(k); C(k); Dm(k); E(k)
            if k > 0: Fs(k - 1)
            if k % 3 == 2: self.S()
        Fs(9)

    def y_write(self, xr, vaddr):
        for i in range(5):
            self.a(f"ds_write_b64 v{vaddr}, v[{xr+2*i}:{xr+2*i+1}] offset:{L_Y + 256*i}")

    def gemm640(self, wa, vyaddr, d, t, vredw, vredr):
        a = self.a
        a("s_waitcnt lgkmcnt(0)")
        a("s_barrier")
        for m in range(5):
            a(f"ds_read_b128 v[{t+4*m}:{t+4*m+3}], v{vyaddr} offset:{L_Y + 64*m}")
        self.S()
        for m in range(5):
            a(f"s_waitcnt lgkmcnt({4-m})")
            c = "0" if m == 0 else rr("v", d, 4)
            a(f"v_mfma_f32_16x16x32_bf16 v[{d}:{d+3}], v[{wa+4*m}:{wa+4*m+3}], v[{t+4*m}:{t+4*m+3}], {c}")
        a("s_nop 7")
        self.reduce4(d, t, vredw, vredr, L_RED)
    def reduce4(self, d, t, vredw, vredr, base):
        a = self.a
        a(f"ds_write_b128 v{vredw}, v[{d}:{d+3}] offset:{base}")
        a("s_waitcnt lgkmcnt(0)")
        a("s_barrier")
        for w in range(4):
            a(f"ds_read_b128 v[{t+4*w}:{t+4*w+3}], v{vredr} offset:{base + 1024*w}")
        a("s_waitcnt lgkmcnt(2)")
        a(f"v_pk_add_f32 v[{d}:{d+1}], v[{t}:{t+1}], v[{t+4}:{t+5}]")
        a(f"v_pk_add_f32 v[{d+2}:{d+3}], v[{t+2}:{t+3}], v[{t+6}:{t+7}]")
        a("s_waitcnt lgkmcnt(0)")
        a(f"v_pk_add_f32 v[{t+8}:{t+9}], v[{t+8}:{t+9}], v[{t+12}:{t+13}]")
        a(f"v_pk_add_f32 v[{t+10}:{t+11}], v[{t+10}:{t+11}], v[{t+14}:{t+15}]")
        a(f"v_pk_add_f32 v[{d}:{d+1}], v[{d}:{d+1}], v[{t+8}:{t+9}]")
        a(f"v_pk_add_f32 v[{d+2}:{d+3}], v[{d+2}:{d+3}], v[{t+10}:{t+11}]")

    def lane_gn(self, vg, vn):
        a = self.a
        a(f"v_lshrrev_b32 v{vg}, 4, v1")
        a(f"v_and_b32 v{vn}, 15, v1")
    def addr_qpub(self, vd, t0, t1):
        a = self.a
        self.lane_gn(t0, t1)
        a(f"s_lshl_b32 s{S_T0}, s{S_H}, 11")
        a(f"s_lshl_b32 s{S_T1}, s{S_B}, 5")
        a(f"s_add_u32 s{S_T0}, s{S_T0}, s{S_T1}")
        a(f"s_add_u32 s{S_T0}, s{S_T0}, s{S_WOOB}")
        a(f"s_add_u32 s{S_T0}, s{S_T0}, {MB_Q}")
        a(f"v_lshlrev_b32 v{vd}, 8, v{t1}")
        a(f"v_lshl_add_u32 v{vd}, v{t0}, 3, v{vd}")
        a(f"v_add_u32 v{vd}, s{S_T0}, v{vd}")
        a(f"v_mov_b32 v{t0}, {OOB}")
        a(f"v_cndmask_b32 v{vd}, v{vd}, v{t0}, {sp(S_MN8)}")
    def addr_qget(self, vd, t0):
        a = self.a
        a(f"s_lshl_b32 s{S_T0}, s{S_H}, 11")
        a(f"s_lshl_b32 s{S_T1}, s{S_B}, 8")
        a(f"s_add_u32 s{S_T0}, s{S_T0}, s{S_T1}")
        a(f"s_add_u32 s{S_T0}, s{S_T0}, {MB_Q}")
        a(f"v_lshrrev_b32 v{t0}, 4, v1")
        a(f"v_lshlrev_b32 v{vd}, 4, v{t0}")
        a(f"v_add_u32 v{vd}, s{S_T0}, v{vd}")
    def addr_opub(self, vd):
        a = self.a
        a(f"s_lshl_b32 s{S_T0}, s{S_H}, 11")
        a(f"s_lshl_b32 s{S_T1}, s{S_B}, 8")
        a(f"s_add_u32 s{S_T0}, s{S_T0}, s{S_T1}")
        a(f"s_add_u32 s{S_T0}, s{S_T0}, s{S_WOOB}")
        a(f"s_add_u32 s{S_T0}, s{S_T0}, {MB_O}")
        a(f"v_lshlrev_b32 v{vd}, 2, v1")
        a(f"v_add_u32 v{vd}, s{S_T0}, v{vd}")
    def addr_ppub(self, vd, base, s_p):
        a = self.a
        a(f"s_lshl_b32 s{S_T0}, s{s_p}, 13")
        a(f"s_lshl_b32 s{S_T1}, s{S_X}, 10")
        a(f"s_add_u32 s{S_T0}, s{S_T0}, s{S_T1}")
        a(f"s_add_u32 s{S_T0}, s{S_T0}, s{S_WOOB}")
        a(f"s_add_u32 s{S_T0}, s{S_T0}, {base}")
        a(f"v_lshlrev_b32 v{vd}, 4, v1")
        a(f"v_add_u32 v{vd}, s{S_T0}, v{vd}")
    def addr_xpub(self, vd, base, t0, t1):
        a = self.a
        self.lane_gn(t0, t1)
        a(f"s_mul_i32 s{S_T0}, s{S_X}, 10240")
        a(f"s_lshl_b32 s{S_T1}, s{S_J}, 9")
        a(f"s_add_u32 s{S_T0}, s{S_T0}, s{S_T1}")
        a(f"s_add_u32 s{S_T0}, s{S_T0}, s{S_WOOB}")
        a(f"s_add_u32 s{S_T0}, s{S_T0}, {base}")
        a(f"v_lshlrev_b32 v{vd}, 3, v{t0}")
        a(f"v_and_b32 v{t0}, 7, v{t1}")
        a(f"v_lshl_add_u32 v{vd}, v{t0}, 6, v{vd}")
        a(f"v_lshrrev_b32 v{t0}, 3, v{t1}")
        a(f"v_lshl_add_u32 v{vd}, v{t0}, 5, v{vd}")
        a(f"v_add_u32 v{vd}, s{S_T0}, v{vd}")
    def addr_hpub(self, vd, t0, t1):
        a = self.a
        self.lane_gn(t0, t1)
        a(f"s_lshl_b32 s{S_T0}, s{S_X}, 12")
        a(f"s_sub_u32 s{S_T1}, s{S_J}, 18")
        a(f"s_lshl_b32 s{S_T1}, s{S_T1}, 8")
        a(f"s_add_u32 s{S_T0}, s{S_T0}, s{S_T1}")
        a(f"s_add_u32 s{S_T0}, s{S_T0}, s{S_WOOB}")
        a(f"s_add_u32 s{S_T0}, s{S_T0}, {MB_H}")
        a(f"v_lshlrev_b32 v{vd}, 3, v{t0}")
        a(f"v_and_b32 v{t0}, 7, v{t1}")
        a(f"v_lshl_add_u32 v{vd}, v{t0}, 5, v{vd}")
        a(f"v_lshrrev_b32 v{t0}, 3, v{t1}")
        a(f"v_lshl_add_u32 v{vd}, v{t0}, 2, v{vd}")
        a(f"v_add_u32 v{vd}, s{S_T0}, v{vd}")
        a(f"s_cmp_eq_u32 s{S_J}, 31")
        a(f"s_cselect_b32 s{S_T1}, 32, 64")
        a(f"v_mov_b32 v{t0}, {OOB}")
        a(f"v_cmp_le_u32 vcc, s{S_T1}, v1")
        a("s_nop 1")
        a(f"v_cndmask_b32 v{vd}, v{vd}, v{t0}, vcc")
    def addr_xget(self, vd, t0):
        a = self.a
        a(f"s_mul_i32 s{S_T0}, s{S_X}, 10240")
        a(f"v_bfe_u32 v{t0}, v0, 3, 2")
        a(f"v_lshlrev_b32 v{vd}, 9, v{t0}")
        a(f"v_lshrrev_b32 v{t0}, 5, v0")
        a(f"v_lshl_add_u32 v{vd}, v{t0}, 6, v{vd}")
        a(f"v_and_b32 v{t0}, 7, v0")
        a(f"v_lshl_add_u32 v{vd}, v{t0}, 3, v{vd}")
        a(f"v_add_u32 v{vd}, s{S_T0}, v{vd}")
    def addr_ywr(self, vd, t0):
        a = self.a
        a(f"v_lshrrev_b32 v{t0}, 5, v0")
        a(f"v_mul_u32_u24 v{vd}, {YP}, v{t0}")
        a(f"v_and_b32 v{t0}, 31, v0")
        a(f"v_lshl_add_u32 v{vd}, v{t0}, 3, v{vd}")
    def addr_yrd(self, vd, t0):
        a = self.a
        a(f"v_and_b32 v{t0}, 7, v1")
        a(f"v_mul_u32_u24 v{vd}, {YP}, v{t0}")
        a(f"v_lshrrev_b32 v{t0}, 4, v1")
        a(f"v_lshl_add_u32 v{vd}, v{t0}, 4, v{vd}")
        a(f"s_mul_i32 s{S_T0}, s{S_W}, 320")
        a(f"v_add_u32 v{vd}, s{S_T0}, v{vd}")
    def addr_red(self, vw, vr):
        a = self.a
        a(f"v_lshlrev_b32 v{vw}, 4, v0")
        a(f"v_lshlrev_b32 v{vr}, 4, v1")

    def phase_q(self, first):
        a = self.a
        XR, T = 16, 26
        self.addr_ywr(40, 41)
        self.addr_yrd(42, 41)
        self.addr_red(43, 44)
        self.addr_qpub(45, 46, 47)
        if not first:
            self.addr_xget(41, 46)
            a(f"s_add_u32 s{S_O1}, s{S_IT}, {MB_X2 - MB_IT}")
            a(f"s_add_u32 s{S_O2}, s{S_O1}, 4096")
            a(f"s_add_u32 s{S_O3}, s{S_O1}, 8192")
            self.poll([(2, XR, 41, S_O1, 0), (2, XR+2, 41, S_O1, 2048), (2, XR+4, 41, S_O2, 0), (2, XR+6, 41, S_O2, 2048), (2, XR+8, 41, S_O3, 0)], 46)
            self.stamp(9)
        self.ln_stats_init(XR, T, T + 1)
        self.ln_finish(XR, T, False)
        self.y_write(XR, 40)
        self.gemm640(V_WQ, 42, 68, 48, 43, 44)
        a("v_cvt_pk_bf16_f32 v68, v68, v69")
        a("v_cvt_pk_bf16_f32 v69, v70, v71")
        a("v_min_u32 v68, -2, v68")
        a("v_min_u32 v69, -2, v69")
        if first:
            self.vm(f"buffer_store_dwordx2 v[68:69], v45, {srd(SRD_MB)}, s{S_IT} offen sc1")
        else:
            self.publish("q", 68, 45, S_IT, 2)

    def phase_att(self, nV_after):
        a = self.a
        QOP = 16
        ACC = [32, 36]
        SC = 40
        KT = 48
        for c in range(4):
            a(f"ds_read_b128 v[{KT+4*c}:{KT+4*c+3}], v6 offset:{KL_OFF + 1024*c}")
        a(f"s_mov_b32 s{S_MASK}, 0x00010001")
        a(f"s_mov_b32 s{S_MASK+1}, 0x00010001")
        def merge(t):
            d = ACC[t % 2]
            for i in range(4):
                if t == 0:
                    a(f"v_mov_b32 v{SC+i}, v{d+i}")
                else:
                    a(f"v_cndmask_b32 v{SC+i}, v{SC+i}, v{d+i}, {sp(S_MASK)}")
            a(f"s_lshl_b64 {sp(S_MASK)}, {sp(S_MASK)}, 1")
        for t in range(16):
            d = ACC[t % 2]
            if t == 15: a("s_waitcnt lgkmcnt(0)")
            for c in range(4):
                src = rr("a", 16 * t + 4 * c, 4) if t < 15 else rr("v", KT + 4 * c, 4)
                cc = "0" if c == 0 else rr("v", d, 4)
                a(f"v_mfma_f32_16x16x32_bf16 v[{d}:{d+3}], {src}, v[{QOP+4*c}:{QOP+4*c+3}], {cc}")
            if t == 0:
                a("s_nop 3")
            else:
                merge(t - 1)
        a("s_nop 3")
        merge(15)
        T = 16
        a(f"v_cvt_pk_bf16_f32 v{T}, v{SC}, v{SC+1}")
        a(f"v_cvt_pk_bf16_f32 v{T+1}, v{SC+2}, v{SC+3}")
        a(f"v_lshlrev_b32 v{SC}, 16, v{T}")
        a(f"v_and_b32 v{SC+1}, 0xffff0000, v{T}")
        a(f"v_lshlrev_b32 v{SC+2}, 16, v{T+1}")
        a(f"v_and_b32 v{SC+3}, 0xffff0000, v{T+1}")
        for i in range(4):
            a(f"v_mul_f32 v{SC+i}, 0x3db504f3, v{SC+i}")
        a(f"v_cvt_pk_bf16_f32 v{T}, v{SC}, v{SC+1}")
        a(f"v_cvt_pk_bf16_f32 v{T+1}, v{SC+2}, v{SC+3}")
        a(f"v_lshlrev_b32 v{SC}, 16, v{T}")
        a(f"v_and_b32 v{SC+1}, 0xffff0000, v{T}")
        a(f"v_lshlrev_b32 v{SC+2}, 16, v{T+1}")
        a(f"v_and_b32 v{SC+3}, 0xffff0000, v{T+1}")
        M = 18
        a(f"v_max3_f32 v{M}, v{SC}, v{SC+1}, v{SC+2}")
        a(f"v_max_f32 v{M}, v{M}, v{SC+3}")
        def allreduce(reg, op, tmp):
            for ctl in ("quad_perm:[1,0,3,2]", "quad_perm:[2,3,0,1]", "row_half_mirror", "row_mirror"):
                a("s_nop 1")
                a(f"{op}_dpp v{reg}, v{reg}, v{reg} {ctl} row_mask:0xf bank_mask:0xf")
            a(f"v_mov_b32 v{tmp}, v{reg}")
            a("s_nop 1")
            a(f"v_permlane16_swap_b32 v{reg}, v{tmp}")
            a("s_nop 0")
            a(f"{op} v{reg}, v{reg}, v{tmp}")
            a(f"v_mov_b32 v{tmp}, v{reg}")
            a("s_nop 1")
            a(f"v_permlane32_swap_b32 v{reg}, v{tmp}")
            a("s_nop 0")
            a(f"{op} v{reg}, v{reg}, v{tmp}")
        allreduce(M, "v_max_f32", 20)
        for i in range(4):
            a(f"v_sub_f32 v{SC+i}, v{SC+i}, v{M}")
        for i in range(4):
            a(f"v_mul_f32 v{SC+i}, 0x3fb8aa3b, v{SC+i}")
        for i in range(4):
            a(f"v_exp_f32 v{SC+i}, v{SC+i}")
        SM = 19
        a("s_nop 0")
        a(f"v_add_f32 v{SM}, v{SC}, v{SC+1}")
        a(f"v_add_f32 v20, v{SC+2}, v{SC+3}")
        a(f"v_add_f32 v{SM}, v{SM}, v20")
        allreduce(SM, "v_add_f32", 20)
        a(f"s_lshl_b32 s{S_T0}, s{S_W}, 3")
        a(f"v_mov_b32 v20, s{S_T0}")
        a(f"v_mov_b32 v21, 0")
        a(f"ds_write_b64 v20, v[{M}:{M+1}] offset:{L_SMX}")
        a("s_waitcnt lgkmcnt(0)")
        a("s_barrier")
        a(f"ds_read_b128 v[24:27], v21 offset:{L_SMX}")
        a(f"ds_read_b128 v[28:31], v21 offset:{L_SMX+16}")
        a("s_waitcnt lgkmcnt(0)")
        a(f"v_max3_f32 v20, v24, v26, v28")
        a(f"v_max_f32 v20, v20, v30")
        for r in (24, 26, 28, 30, M):
            a(f"v_sub_f32 v{r}, v{r}, v20")
        for r in (24, 26, 28, 30, M):
            a(f"v_mul_f32 v{r}, 0x3fb8aa3b, v{r}")
        for r in (24, 26, 28, 30, M):
            a(f"v_exp_f32 v{r}, v{r}")
        a("s_nop 0")
        a(f"v_mul_f32 v21, v24, v25")
        a(f"v_fmac_f32 v21, v26, v27")
        a(f"v_fmac_f32 v21, v28, v29")
        a(f"v_fmac_f32 v21, v30, v31")
        a(f"v_rcp_f32 v21, v21")
        a("s_nop 0")
        a(f"v_mul_f32 v21, v21, v{M}")
        for i in range(4):
            a(f"v_mul_f32 v{SC+i}, v{SC+i}, v21")
        PC = 16
        a(f"v_cvt_pk_bf16_f32 v{PC}, v{SC}, v{SC+1}")
        a(f"v_cvt_pk_bf16_f32 v{PC+1}, v{SC+2}, v{SC+3}")
        self.stamp(2)
        PO = [20, 24]
        LB = [28, 32, 36]
        OA = 40
        def pop(m, s):
            p = PO[s]
            a(f"v_mov_b32_dpp v{p}, v{PC} row_newbcast:{2*m} row_mask:0xf bank_mask:0xf")
            a(f"v_mov_b32_dpp v{p+1}, v{PC+1} row_newbcast:{2*m} row_mask:0xf bank_mask:0xf")
            a(f"v_mov_b32_dpp v{p+2}, v{PC} row_newbcast:{2*m+1} row_mask:0xf bank_mask:0xf")
            a(f"v_mov_b32_dpp v{p+3}, v{PC+1} row_newbcast:{2*m+1} row_mask:0xf bank_mask:0xf")
        def lread(m, d, buf):
            b = LB[buf]
            a(f"ds_read_b64_tr_b16 v[{b}:{b+1}], v{8+d} offset:{(m-4)*8192}")
            a(f"ds_read_b64_tr_b16 v[{b+2}:{b+3}], v{8+d} offset:{(m-4)*8192 + 4096}")
        def mf(d, ps, bsrc, first):
            c = "0" if first else rr("v", OA + 4 * d, 4)
            a(f"v_mfma_f32_16x16x32_bf16 v[{OA+4*d}:{OA+4*d+3}], v[{PO[ps]}:{PO[ps]+3}], {bsrc}, {c}")
        a("s_nop 1")
        pop(0, 0)
        a("s_nop 1")
        for d in range(8):
            t, r = vreg_V(0, d)
            mf(d, 0, rr(t, r, 4), True)
        lops = [(m, d) for m in range(4, 8) for d in range(8)]
        nread = 0
        def issue_read():
            nonlocal nread
            if nread < len(lops):
                m, d = lops[nread]
                if d == 0:
                    a(f"s_waitcnt vmcnt({nV_after + (7-m)*8})")
                lread(m, d, nread % 3)
                nread += 1
        issue_read(); issue_read(); issue_read()
        k = 0
        for m in range(4, 8):
            if m < 7: pop(m - 3, 0)
            pop(m, 1)
            if m == 7: a("s_nop 1")
            for d in range(8):
                if m < 7:
                    t, r = vreg_V(m - 3, d)
                    mf(d, 0, rr(t, r, 4), False)
                outstanding = (nread - k - 1) * 2
                a(f"s_waitcnt lgkmcnt({outstanding})")
                mf(d, 1, rr("v", LB[k % 3], 4), False)
                k += 1
                issue_read()
        a("s_nop 7")
        a("s_nop 0")
        for half in range(2):
            o = 16 + half
            a(f"v_cndmask_b32 v{o}, v{OA+16*half}, v{OA+16*half+4}, {sp(S_MG1)}")
            a(f"v_cndmask_b32 v{o}, v{o}, v{OA+16*half+8}, {sp(S_MG2)}")
            a(f"v_cndmask_b32 v{o}, v{o}, v{OA+16*half+12}, {sp(S_MG3)}")
        a(f"s_lshl_b32 s{S_T0}, s{S_W}, 9")
        a(f"v_lshlrev_b32 v18, 2, v1")
        a(f"v_add_u32 v18, s{S_T0}, v18")
        a(f"v_add_u32 v18, {L_Y}, v18")
        a(f"ds_write2st64_b32 v18, v16, v17 offset0:0 offset1:1")
        a(f"v_lshlrev_b32 v19, 3, v1")
        self.addr_opub(28)
        a("s_waitcnt lgkmcnt(0)")
        a("s_barrier")
        for w in range(4):
            a(f"ds_read_b64 v[{20+2*w}:{21+2*w}], v19 offset:{L_Y + 512*w}")
        a("s_waitcnt lgkmcnt(2)")
        a("v_pk_add_f32 v[20:21], v[20:21], v[22:23]")
        a("s_waitcnt lgkmcnt(0)")
        a("v_pk_add_f32 v[24:25], v[24:25], v[26:27]")
        a("v_pk_add_f32 v[20:21], v[20:21], v[24:25]")
        a("v_cvt_pk_bf16_f32 v20, v20, v21")
        a("v_min_u32 v20, -2, v20")
        self.publish("o", 20, 28, S_IT, 1)

    def tile32_epilogue(self, d0, d1, t, base_lds, mb_base, s_p):
        a = self.a
        self.addr_red(43, 44)
        self.addr_ppub(45, mb_base, s_p)
        for i in range(4):
            a(f"v_cndmask_b32 v{d0+i}, v{d0+i}, v{d1+i}, {sp(S_MN8)}")
        self.reduce4(d0, t, 43, 44, base_lds)
        for i in range(4):
            a(f"v_min_u32 v{d0+i}, -2, v{d0+i}")
        self.publish("p", d0, 45, S_IT, 4, force_global=True)

    def phase_wo(self):
        a = self.a
        self.lane_gn(40, 41)
        a(f"s_lshl_b32 s{S_T0}, s{S_W}, 3")
        a(f"s_add_u32 s{S_T0}, s{S_T0}, s{S_X}")
        a(f"s_lshl_b32 s{S_T0}, s{S_T0}, 11")
        a(f"s_add_u32 s{S_T0}, s{S_T0}, {MB_O}")
        a(f"v_and_b32 v41, 7, v41")
        a(f"v_lshlrev_b32 v42, 8, v41")
        a(f"v_lshl_add_u32 v42, v40, 4, v42")
        a(f"v_add_u32 v42, s{S_T0}, v42")
        self.poll([(4, 16 + 4 * kb, 42, S_IT, 64 * kb) for kb in range(4)], 40)
        self.stamp(4)
        for kb in range(4):
            for nt in range(2):
                d = 32 + 4 * nt
                c = "0" if kb == 0 else rr("v", d, 4)
                a(f"v_mfma_f32_16x16x32_bf16 v[{d}:{d+3}], v[{V_R1+4*(2*kb+nt)}:{V_R1+4*(2*kb+nt)+3}], v[{16+4*kb}:{19+4*kb}], {c}")
        self.tile32_epilogue(32, 36, 48, L_RED, MB_PA, S_J)

    def phase_reduce(self, which):
        a = self.a
        base = MB_PA if which == "A" else MB_PB
        a(f"v_lshlrev_b32 v40, 3, v1")
        a(f"ds_read_b64 v[56:57], v40 offset:{L_XS}")
        if which == "B":
            a(f"ds_read_b64 v[58:59], v40 offset:{L_B2}")
        a(f"s_lshl_b32 s{S_T0}, s{S_J}, 13")
        a(f"s_add_u32 s{S_T0}, s{S_T0}, {base}")
        a(f"v_lshlrev_b32 v41, 4, v1")
        a(f"v_add_u32 v41, s{S_T0}, v41")
        a(f"s_add_u32 s{S_O2}, s{S_IT}, 4096")
        self.addr_xpub(42, MB_X1 if which == "A" else MB_X2, 43, 44)
        a("s_waitcnt lgkmcnt(0)")
        a("v_lshlrev_b32 v60, 16, v56")
        a("v_and_b32 v61, 0xffff0000, v56")
        a("v_lshlrev_b32 v62, 16, v57")
        a("v_and_b32 v63, 0xffff0000, v57")
        if which == "B":
            a("v_lshlrev_b32 v64, 16, v58")
            a("v_and_b32 v65, 0xffff0000, v58")
            a("v_lshlrev_b32 v66, 16, v59")
            a("v_and_b32 v67, 0xffff0000, v59")
        dst = [16, 20, 24, 28, 32, 36, 48, 52]
        self.poll([(4, dst[x], 41, S_IT if x < 4 else S_O2, 1024 * (x % 4)) for x in range(8)], 43)
        self.stamp(5 if which == "A" else 8)
        def padd(x, y):
            a(f"v_pk_add_f32 v[{x}:{x+1}], v[{x}:{x+1}], v[{y}:{y+1}]")
            a(f"v_pk_add_f32 v[{x+2}:{x+3}], v[{x+2}:{x+3}], v[{y+2}:{y+3}]")
        padd(16, 20); padd(24, 28); padd(32, 36); padd(48, 52)
        padd(16, 24); padd(32, 48); padd(16, 32)
        def rnd():
            a("v_cvt_pk_bf16_f32 v20, v16, v17")
            a("v_cvt_pk_bf16_f32 v21, v18, v19")
            a("v_lshlrev_b32 v16, 16, v20")
            a("v_and_b32 v17, 0xffff0000, v20")
            a("v_lshlrev_b32 v18, 16, v21")
            a("v_and_b32 v19, 0xffff0000, v21")
        rnd()
        if which == "B":
            padd(16, 64)
            rnd()
        padd(16, 60)
        a("v_cvt_pk_bf16_f32 v20, v16, v17")
        a("v_cvt_pk_bf16_f32 v21, v18, v19")
        if which == "B":
            lf = a.newlabel("Lfinal"); le = a.newlabel("Lre")
            a(f"s_cmp_eq_u32 s{S_ITN}, 1")
            a(f"s_cbranch_scc1 {lf}")
        a("v_min_u32 v22, -2, v20")
        a("v_min_u32 v23, -2, v21")
        self.publish("x", 22, 42, S_IT, 2)
        a(f"ds_write_b64 v40, v[20:21] offset:{L_XS}")
        a("s_waitcnt lgkmcnt(0)")
        if which == "B":
            a(f"s_branch {le}")
            a.label(lf)
            self.mk_srd(SRD_C, P_OUT, 10240)
            self.lane_gn(43, 44)
            a(f"s_mul_i32 s{S_T0}, s{S_X}, 1280")
            a(f"s_lshl_b32 s{S_T1}, s{S_J}, 6")
            a(f"s_add_u32 s{S_T0}, s{S_T0}, s{S_T1}")
            a(f"v_lshlrev_b32 v45, 3, v43")
            a(f"v_lshrrev_b32 v43, 3, v44")
            a(f"v_lshl_add_u32 v45, v43, 5, v45")
            a(f"v_add_u32 v45, s{S_T0}, v45")
            a(f"v_and_b32 v44, 7, v44")
            a(f"v_mov_b32 v43, {OOB}")
            a(f"v_cmp_ne_u32 vcc, s{S_X}, v44")
            a("s_nop 1")
            a(f"v_cndmask_b32 v45, v45, v43, vcc")
            a(f"buffer_store_dwordx2 v[20:21], v45, {srd(SRD_C)}, 0 offen")
            a.label(le)

    def phase_w1(self):
        a = self.a
        XR, T = 16, 26
        self.addr_ywr(40, 41)
        self.addr_yrd(42, 41)
        self.addr_red(43, 44)
        self.addr_hpub(45, 46, 47)
        self.addr_xget(41, 46)
        a(f"v_lshlrev_b32 v46, 2, v1")
        a(f"ds_read_b32 v47, v46 offset:{L_B1}")
        a(f"s_add_u32 s{S_O1}, s{S_IT}, {MB_X1}")
        a(f"s_add_u32 s{S_O2}, s{S_O1}, 4096")
        a(f"s_add_u32 s{S_O3}, s{S_O1}, 8192")
        self.poll([(2, XR, 41, S_O1, 0), (2, XR+2, 41, S_O1, 2048), (2, XR+4, 41, S_O2, 0), (2, XR+6, 41, S_O2, 2048), (2, XR+8, 41, S_O3, 0)], 46)
        self.stamp(6)
        self.ln_stats_init(XR, T, T + 1)
        self.ln_finish(XR, T, True)
        self.ln_finish(XR, T, False)
        self.y_write(XR, 40)
        self.gemm640(V_R2, 42, 68, 48, 43, 44)
        a(f"v_cndmask_b32 v16, v68, v70, {sp(S_MN8)}")
        a(f"v_cndmask_b32 v17, v69, v71, {sp(S_MN8)}")
        a("v_cvt_pk_bf16_f32 v18, v16, v17")
        a("v_lshlrev_b32 v20, 16, v47")
        a("v_and_b32 v21, 0xffff0000, v47")
        a("v_lshlrev_b32 v16, 16, v18")
        a("v_and_b32 v17, 0xffff0000, v18")
        a("v_pk_add_f32 v[16:17], v[16:17], v[20:21]")
        a("v_cvt_pk_bf16_f32 v18, v16, v17")
        a("v_lshlrev_b32 v16, 16, v18")
        a("v_and_b32 v17, 0xffff0000, v18")
        a("v_mul_f32 v18, v16, v16")
        a("v_mul_f32 v19, v17, v17")
        a("v_mul_f32 v18, 0x3d372713, v18")
        a("v_mul_f32 v19, 0x3d372713, v19")
        a("v_fma_f32 v18, v18, v16, v16")
        a("v_fma_f32 v19, v19, v17, v17")
        a("v_mul_f32 v18, 0xc0135761, v18")
        a("v_mul_f32 v19, 0xc0135761, v19")
        a("v_exp_f32 v18, v18")
        a("v_exp_f32 v19, v19")
        a("s_nop 0")
        a("v_add_f32 v18, 1.0, v18")
        a("v_add_f32 v19, 1.0, v19")
        a("v_rcp_f32 v18, v18")
        a("v_rcp_f32 v19, v19")
        a("s_nop 0")
        a("v_mul_f32 v16, v16, v18")
        a("v_mul_f32 v17, v17, v19")
        a("v_cvt_pk_bf16_f32 v16, v16, v17")
        a("v_min_u32 v16, -2, v16")
        self.publish("h", 16, 45, S_IT, 1)

    def phase_w2(self, wreg, s_p):
        a = self.a
        self.lane_gn(40, 41)
        a(f"s_lshl_b32 s{S_T0}, s{S_X}, 12")
        a(f"s_lshl_b32 s{S_T1}, s{S_W}, 10")
        a(f"s_add_u32 s{S_T0}, s{S_T0}, s{S_T1}")
        a(f"s_add_u32 s{S_T0}, s{S_T0}, {MB_H}")
        a(f"v_and_b32 v41, 7, v41")
        a(f"v_lshlrev_b32 v42, 5, v41")
        a(f"v_lshrrev_b32 v41, 1, v40")
        a(f"v_lshl_add_u32 v42, v41, 8, v42")
        a(f"v_and_b32 v41, 1, v40")
        a(f"v_lshl_add_u32 v42, v41, 4, v42")
        a(f"v_add_u32 v42, s{S_T0}, v42")
        a(f"v_add_u32 v46, 512, v42")
        a(f"s_cmp_eq_u32 s{S_W}, 3")
        a(f"s_cselect_b32 s{S_T0}, 48, 64")
        a(f"s_cselect_b32 s{S_T1}, 0, 64")
        a(f"v_mov_b32 v41, {OOB}")
        a(f"v_cmp_le_u32 vcc, s{S_T0}, v1")
        a("s_nop 1")
        a(f"v_cndmask_b32 v42, v42, v41, vcc")
        a(f"v_cmp_le_u32 vcc, s{S_T1}, v1")
        a("s_nop 1")
        a(f"v_cndmask_b32 v46, v46, v41, vcc")
        self.poll([(4, 16, 42, S_IT, 0), (4, 20, 46, S_IT, 0)], 40)
        self.stamp(7)
        for kb in range(2):
            for nt in range(2):
                d = 32 + 4 * nt
                c = "0" if kb == 0 else rr("v", d, 4)
                a(f"v_mfma_f32_16x16x32_bf16 v[{d}:{d+3}], v[{wreg+4*(2*kb+nt)}:{wreg+4*(2*kb+nt)+3}], v[{16+4*kb}:{19+4*kb}], {c}")
        self.tile32_epilogue(32, 36, 48, L_Y, MB_PB, s_p)

    def build_stream(self):
        K, V = [], []
        for u in range(64):
            t, c = divmod(u, 4)
            def f(g, u=u, t=t, c=c):
                a = g.a
                if t < 15:
                    g.vm(f"buffer_load_dwordx4 a[{4*u}:{4*u+3}], v2, {srd(SRD_K)}, s{S_KOFF} offen offset:{64*c} nt", f"K{u}")
                else:
                    a(f"s_add_u32 m0, s{S_WB}, {KL_OFF + 1024*c - 64*c}")
                    a("s_nop 0")
                    g.vm(f"buffer_load_dwordx4 v2, {srd(SRD_K)}, s{S_KOFF} offen offset:{64*c} nt lds", f"K{u}")
                if c == 3:
                    a(f"s_add_u32 s{S_KOFF}, s{S_KOFF}, 4096")
                    a(f"s_and_b32 s{S_KOFF}, s{S_KOFF}, 0xffff")
            K.append(f)
        for u in range(64):
            def f(g, u=u):
                a = g.a
                q, c = divmod(u, 4)
                if u >= 32 and c == 0:
                    assert ("TR", q - 8) in g.done, f"slot group {q-8} not drained before V{u}"
                if 14 <= u < 32:
                    assert "WTS" in g.done, f"weights not drained before V{u}"
                a(f"s_add_u32 m0, s{S_WB}, {(q % 8) * 4096}")
                a("s_nop 0")
                g.vm(f"buffer_load_dwordx4 v{3 + (u & 1)}, {srd(SRD_V)}, s{S_VOFF} offen offset:{1024*c} nt lds", f"V{u}")
                if c == 3:
                    a(f"s_add_u32 s{S_VOFF}, s{S_VOFF}, 4096")
                    a(f"s_and_b32 s{S_VOFF}, s{S_VOFF}, 0xffff")
            V.append(f)
        return K, V
    def tr_halfblock(self, q):
        a = self.a
        m, hf = divmod(q, 2)
        self.wait_tag(f"V{4*q+3}")
        for d in range(8):
            t, r = vreg_V(m, d)
            a(f"ds_read_b64_tr_b16 {t}[{r+2*hf}:{r+2*hf+1}], v{8+d} offset:{m*8192 + hf*4096}")
        a("s_waitcnt lgkmcnt(0)")
        self.done.add(("TR", q))

    def flags_check(self, vf):
        a = self.a
        a(f"v_sad_u8 v{vf+1}, v{vf}, 0, 0")
        a("s_nop 1")
        a(f"v_add_u32_dpp v{vf+1}, v{vf+1}, v{vf+1} quad_perm:[1,0,3,2] row_mask:0xf bank_mask:0xf")
        a(f"v_cmp_eq_u32 vcc, 32, v{vf+1}")
        a(f"s_lshl_b32 s{S_T0}, s{S_X}, 1")
        a(f"s_lshr_b32 s{S_T1}, s{S_XCC}, 2")
        a(f"s_add_u32 s{S_T0}, s{S_T0}, s{S_T1}")
        a(f"s_and_b32 s{S_T2}, vcc_lo, 0xffff")
        a(f"v_readlane_b32 s{S_T3}, v{vf}, s{S_T0}")
        a(f"s_cmp_eq_u32 s{S_T2}, 0xffff")
        a(f"s_cselect_b32 s{S_OK}, 1, 0")
        a(f"s_and_b32 s{S_T1}, s{S_XCC}, 3")
        a(f"s_lshl_b32 s{S_T1}, s{S_T1}, 3")
        a(f"s_lshr_b32 s{S_T3}, s{S_T3}, s{S_T1}")
        a(f"s_and_b32 s{S_T3}, s{S_T3}, 0xff")
        a(f"s_cmp_eq_u32 s{S_T3}, 32")
        a(f"s_cselect_b32 s{S_LOCAL}, 1, 0")
        if self.opts.get("force_global"):
            a(f"s_mov_b32 s{S_LOCAL}, 0")

    def generate(self):
        a = self.a
        self.done = set()
        a("s_cmp_ge_u32 s2, 256")
        a("s_cbranch_scc1 L_end")
        a("s_load_dwordx16 s[64:79], s[0:1], 0")
        a("s_load_dwordx8 s[80:87], s[0:1], 64")
        a("s_load_dwordx2 s[88:89], s[0:1], 96")
        a("v_and_b32 v1, 63, v0")
        a("v_lshrrev_b32 v7, 6, v0")
        a(f"s_and_b32 s{S_X}, s2, 7")
        a(f"v_readfirstlane_b32 s{S_W}, v7")
        a(f"s_lshr_b32 s{S_J}, s2, 3")
        a(f"s_and_b32 s{S_H}, s2, 31")
        a(f"s_lshr_b32 s{S_B}, s2, 5")
        a(f"s_getreg_b32 s{S_XCC}, hwreg(HW_REG_XCC_ID)")
        a(f"s_and_b32 s{S_XCC}, s{S_XCC}, 7")
        a("v_lshrrev_b32 v16, 4, v1")
        a("v_and_b32 v17, 15, v1")
        a("v_lshlrev_b32 v2, 8, v17")
        a("v_lshl_add_u32 v2, v16, 4, v2")
        a("v_lshlrev_b32 v18, 1, v16")
        a("v_xor_b32 v19, v17, v18")
        a("v_lshlrev_b32 v3, 8, v16")
        a("v_lshl_add_u32 v3, v19, 4, v3")
        a("v_xor_b32 v4, 0x80, v3")
        a(f"s_mul_i32 s{S_WB}, s{S_W}, {WREG}")
        a(f"s_add_u32 s{S_WB}, s{S_WB}, {WBASE}")
        a(f"s_lshl_b32 s{S_T0}, s2, 20")
        a(f"s_lshl_b32 s{S_T1}, s{S_W}, 16")
        a(f"s_add_u32 s{S_T0}, s{S_T0}, s{S_T1}")
        a(f"s_add_u32 s{S_T0}, s{S_T0}, 0xC0000")
        a(f"s_lshl_b32 s{S_T1}, s{S_W}, 1")
        a(f"s_add_u32 s{S_T1}, s{S_T1}, s{S_J}")
        a(f"s_and_b32 s{S_T1}, s{S_T1}, 7")
        a(f"s_lshl_b32 s{S_KOFF}, s{S_T1}, 13")
        a(f"s_mov_b32 s{S_VOFF}, s{S_KOFF}")
        a("s_waitcnt lgkmcnt(0)")
        self.mk_srd(SRD_K, P_K, 0x10000, S_T0)
        self.mk_srd(SRD_V, P_V, 0x10000, S_T0)
        if self.stamps:
            a("v_mov_b32 v7, 0")
            self.stamp(0)
        K, V = self.build_stream()
        seq = []
        for i in range(32):
            seq += [K[2*i], K[2*i+1], V[i]]
        seq += V[32:]
        self.stream = seq
        self.S(3)
        self.mk_srd(SRD_MB, P_WS, MB_SIZE)
        self.mk_srd(SRD_DBG, P_DBG, 64)
        a(f"s_mov_b32 s{S_IT}, 0")
        a(f"s_mov_b32 s{S_ITN}, 0")
        a(f"s_mov_b32 s{S_LOCAL}, 0")
        a(f"s_mov_b32 s{S_ONES}, 0x3f803f80")
        a(f"s_mov_b32 s{S_SELLO}, 0x00003f80")
        a(f"s_mov_b32 s{S_SELHI}, 0x3f800000")
        a(f"s_mov_b32 s{S_MG1}, 0xffff0000\ns_mov_b32 s{S_MG1+1}, 0")
        a(f"s_mov_b32 s{S_MG2}, 0\ns_mov_b32 s{S_MG2+1}, 0x0000ffff")
        a(f"s_mov_b32 s{S_MG3}, 0\ns_mov_b32 s{S_MG3+1}, 0xffff0000")
        a(f"s_mov_b32 s{S_MN8}, 0xff00ff00\ns_mov_b32 s{S_MN8+1}, 0xff00ff00")
        a(f"s_cmp_eq_u32 s{S_W}, 0")
        a(f"s_cselect_b32 s{S_WOOB}, 0, 0x40000000")
        a("v_lshrrev_b32 v26, 5, v0")
        a("v_mul_u32_u24 v27, 1280, v26")
        a("v_and_b32 v26, 31, v0")
        a("v_lshl_add_u32 v27, v26, 3, v27")
        a("v_lshrrev_b32 v28, 1, v1")
        a("v_and_b32 v29, 1, v1")
        a("v_lshlrev_b32 v30, 13, v28")
        a("v_lshl_add_u32 v30, v29, 4, v30")
        a("v_mul_u32_u24 v31, 3456, v28")
        a("v_lshl_add_u32 v31, v29, 4, v31")
        a("v_lshrrev_b32 v28, 2, v1")
        a("v_and_b32 v29, 3, v1")
        a("v_mul_u32_u24 v32, 1280, v28")
        a("v_lshl_add_u32 v32, v29, 4, v32")
        a("v_lshrrev_b32 v28, 3, v17")
        a("v_lshlrev_b32 v33, 5, v28")
        a("v_lshl_add_u32 v33, v16, 3, v33")
        a(f"s_lshl_b32 s{S_T0}, s{S_J}, 6")
        a(f"v_add_u32 v33, s{S_T0}, v33")
        a("v_and_b32 v29, 7, v17")
        a("v_mul_u32_u24 v34, 1280, v29")
        a("v_add_u32 v34, v34, v33")
        a(f"s_mul_i32 s{S_T2}, s{S_X}, 432")
        a(f"s_sub_u32 s{S_T3}, s{S_J}, 18")
        a(f"s_lshl_b32 s{S_T3}, s{S_T3}, 5")
        a(f"s_add_u32 s{S_T2}, s{S_T2}, s{S_T3}")
        a(f"s_cmp_lt_u32 s{S_J}, 18")
        a(f"s_cselect_b32 s{S_O3}, {OOB}, s{S_T2}")
        a("v_lshlrev_b32 v35, 3, v16")
        a("v_lshl_add_u32 v35, v28, 2, v35")
        a(f"v_add_u32 v35, s{S_O3}, v35")
        a("v_lshrrev_b32 v28, 2, v1")
        a("v_lshlrev_b32 v8, 8, v28")
        a("v_and_b32 v29, 7, v28")
        a("v_lshl_add_u32 v8, v29, 5, v8")
        a("v_and_b32 v29, 3, v1")
        a("v_lshl_add_u32 v8, v29, 3, v8")
        for d in range(1, 8):
            a(f"v_xor_b32 v{8+d}, {d << 5}, v8")
        for d in range(8):
            a(f"v_add_u32 v{8+d}, s{S_WB}, v{8+d}")
        a("v_lshlrev_b32 v6, 4, v1")
        a(f"v_add_u32 v6, s{S_WB}, v6")
        a("v_bfe_u32 v28, v1, 2, 2")
        a("v_lshl_add_u32 v28, v16, 3, v28")
        a("v_lshlrev_b32 v36, 5, v28")
        a("v_lshl_add_u32 v36, v29, 3, v36")
        a(f"v_add_u32 v36, s{S_WB}, v36")
        a("v_lshlrev_b32 v37, 6, v28")
        a("v_lshl_add_u32 v37, v29, 3, v37")
        a(f"v_add_u32 v37, s{S_WB}, v37")
        self.mk_srd(SRD_A, P_X, 10240)
        for i in range(5):
            self.vm(f"buffer_load_dwordx2 v[{16+2*i}:{17+2*i}], v27, {srd(SRD_A)}, 0 offen offset:{256*i}")
        self.vm(f"buffer_load_dwordx2 v[62:63], v34, {srd(SRD_A)}, 0 offen")
        self.mk_srd(SRD_B, P_WQ, 640 * 8192)
        a(f"s_mul_i32 s{S_T0}, s{S_W}, {160*8192}")
        a(f"s_lshl_b32 s{S_T1}, s{S_H}, 8")
        a(f"s_add_u32 s{S_T0}, s{S_T0}, s{S_T1}")
        a(f"s_lshl_b32 s{S_T1}, s{S_B}, 5")
        a(f"s_add_u32 s{S_T0}, s{S_T0}, s{S_T1}")
        for m in range(5):
            a(f"s_add_u32 m0, s{S_WB}, {(SLOT_WQ + m) * 1024}")
            a("s_nop 0")
            self.vm(f"buffer_load_dwordx4 v30, {srd(SRD_B)}, s{S_T0} offen nt lds", "WQ" if m == 4 else None)
            if m < 4: a(f"s_add_u32 s{S_T0}, s{S_T0}, {32*8192}")
        self.mk_srd(SRD_A, P_B2, 1280)
        self.vm(f"buffer_load_dwordx2 v[64:65], v33, {srd(SRD_A)}, 0 offen")
        self.mk_srd(SRD_B, P_B1, 3456)
        self.vm(f"buffer_load_dword v66, v35, {srd(SRD_B)}, 0 offen")
        a("v_mov_b32 v56, -1\nv_mov_b32 v57, -1\nv_mov_b32 v58, -1\nv_mov_b32 v59, -1")
        a(f"s_mov_b32 s{S_O1}, {MB_IT}")
        def clear(n, va):
            op = {1: "buffer_store_dword", 2: "buffer_store_dwordx2", 4: "buffer_store_dwordx4"}[n]
            d = "v56" if n == 1 else rr("v", 56, n)
            self.vm(f"{op} {d}, v{va}, {srd(SRD_MB)}, s{S_IT} offen sc1")
            self.vm(f"{op} {d}, v{va}, {srd(SRD_MB)}, s{S_O1} offen sc1", "CLR")
        self.addr_qpub(40, 41, 42); clear(2, 40)
        self.addr_opub(43); clear(1, 43)
        a(f"s_cmp_lt_u32 s{S_J}, 20")
        a(f"s_cselect_b32 s{S_O2}, s{S_J}, 0x20000")
        self.addr_ppub(44, MB_PA, S_O2); clear(4, 44)
        self.calc_p2(S_O2)
        self.addr_ppub(45, MB_PB, S_O2); clear(4, 45)
        self.addr_xpub(46, MB_X1, 41, 42)
        a(f"s_cmp_lt_u32 s{S_J}, 20")
        a(f"s_cselect_b32 s{S_T0}, 0, 0x40000000")
        a(f"v_add_u32 v46, s{S_T0}, v46")
        clear(2, 46)
        a(f"v_add_u32 v46, {MB_X2 - MB_X1}, v46")
        clear(2, 46)
        self.addr_hpub(47, 41, 42)
        a(f"s_cmp_ge_u32 s{S_J}, 18")
        a(f"s_cselect_b32 s{S_T0}, 0, 0x40000000")
        a(f"v_or_b32 v47, s{S_T0}, v47")
        clear(1, 47)
        self.S(3)
        a(f"s_mul_i32 s{S_T2}, s{S_X}, {216*1280}")
        a(f"s_add_u32 s{S_T2}, s{P_W2}, s{S_T2}")
        a(f"s_addc_u32 s{S_T3}, s{P_W2+1}, 0")
        a(f"s_cmp_lt_u32 s{S_J}, 20")
        a(f"s_cselect_b32 s{SRD_A}, s{P_WO}, s{S_T2}")
        a(f"s_cselect_b32 s{SRD_A+1}, s{P_WO+1}, s{S_T3}")
        a(f"s_mov_b32 s{SRD_A+2}, {216*1280}")
        a(f"s_cmov_b32 s{SRD_A+2}, {4096*1280}")
        a(f"s_mov_b32 s{SRD_A+3}, 0x20000")
        a(f"s_lshl_b32 s{S_T0}, s{S_W}, 3")
        a(f"s_add_u32 s{S_T0}, s{S_T0}, s{S_X}")
        a(f"s_lshl_b32 s{S_T0}, s{S_T0}, 7")
        a(f"s_lshl_b32 s{S_T1}, s{S_W}, 6")
        a(f"s_cmp_lt_u32 s{S_J}, 20")
        a(f"s_cselect_b32 s{S_T0}, s{S_T0}, s{S_T1}")
        a(f"s_mul_i32 s{S_T0}, s{S_T0}, 1280")
        a(f"s_sub_u32 s{S_T1}, s{S_J}, 20")
        a(f"s_cmp_lt_u32 s{S_J}, 20")
        a(f"s_cselect_b32 s{S_T1}, s{S_J}, s{S_T1}")
        a(f"s_mov_b32 s{S_O2}, 0x40000000")
        a(f"s_cmov_b32 s{S_O2}, {16*1280}")
        a(f"s_lshl_b32 s{S_T1}, s{S_T1}, 6")
        a(f"s_add_u32 s{S_T0}, s{S_T0}, s{S_T1}")
        for e in range(8):
            a(f"s_add_u32 m0, s{S_WB}, {(SLOT_R1 + e) * 1024}")
            a("s_nop 0")
            self.vm(f"buffer_load_dwordx4 v32, {srd(SRD_A)}, s{S_T0} offen nt lds")
            if e == 3: a(f"s_add_u32 s{S_T0}, s{S_T0}, s{S_O2}")
            elif e < 7: a(f"s_add_u32 s{S_T0}, s{S_T0}, {16*1280}")
        a(f"s_cmp_ge_u32 s{S_J}, 18")
        a(f"s_cselect_b32 s{SRD_B}, s{P_W1}, s{S_T2}")
        a(f"s_cselect_b32 s{SRD_B+1}, s{P_W1+1}, s{S_T3}")
        a(f"s_mov_b32 s{SRD_B+2}, {216*1280}")
        a(f"s_cmov_b32 s{SRD_B+2}, {640*3456}")
        a(f"s_mov_b32 s{SRD_B+3}, 0x20000")
        a(f"s_cselect_b64 {sp(S_MASK)}, -1, 0")
        a(f"v_cndmask_b32 v38, v32, v31, {sp(S_MASK)}")
        a(f"s_mul_i32 s{S_T0}, s{S_W}, {160*3456}")
        a(f"s_add_u32 s{S_T0}, s{S_T0}, s{S_O3}")
        a(f"s_mul_i32 s{S_T1}, s{S_W}, {64*1280}")
        a(f"s_lshl_b32 s{S_O2}, s{S_J}, 6")
        a(f"s_add_u32 s{S_T1}, s{S_T1}, s{S_O2}")
        a(f"s_add_u32 s{S_T1}, s{S_T1}, {12*64}")
        a(f"s_cmp_lt_u32 s{S_J}, 8")
        a(f"s_cselect_b32 s{S_T1}, s{S_T1}, 0x40000000")
        a(f"s_cmp_ge_u32 s{S_J}, 18")
        a(f"s_cselect_b32 s{S_T0}, s{S_T0}, s{S_T1}")
        a(f"s_mov_b32 s{S_O1}, {16*1280}")
        a(f"s_cmov_b32 s{S_O1}, {32*3456}")
        a(f"s_mov_b32 s{S_O2}, 0x20000000")
        a(f"s_cmov_b32 s{S_O2}, {32*3456}")
        for m in range(5):
            a(f"s_add_u32 m0, s{S_WB}, {(SLOT_R2 + m) * 1024}")
            a("s_nop 0")
            self.vm(f"buffer_load_dwordx4 v38, {srd(SRD_B)}, s{S_T0} offen nt lds", "W" if m == 4 else None)
            if m < 3: a(f"s_add_u32 s{S_T0}, s{S_T0}, s{S_O1}")
            elif m == 3: a(f"s_add_u32 s{S_T0}, s{S_T0}, s{S_O2}")
        self.S(9)
        self.wait_tag("CLR")
        a("v_lshlrev_b32 v39, 3, v1")
        a(f"ds_write_b64 v39, v[62:63] offset:{L_XS}")
        a(f"ds_write_b64 v39, v[64:65] offset:{L_B2}")
        a("v_lshlrev_b32 v39, 2, v1")
        a(f"ds_write_b32 v39, v66 offset:{L_B1}")
        for m in range(5):
            a(f"ds_read_b64_tr_b16 v[{V_WQ+4*m}:{V_WQ+4*m+1}], v36 offset:{(SLOT_WQ+m)*1024}")
            a(f"ds_read_b64_tr_b16 v[{V_WQ+4*m+2}:{V_WQ+4*m+3}], v36 offset:{(SLOT_WQ+m)*1024 + 128}")
        a("v_mov_b32 v254, v36")
        a("v_mov_b32 v255, v37")
        a("s_barrier")
        a(f"s_lshl_b32 s{S_T0}, s{S_XCC}, 3")
        a(f"s_lshl_b64 {sp(S_T2)}, 1, s{S_T0}")
        a(f"v_mov_b32 v66, s{S_T2}")
        a(f"v_mov_b32 v67, s{S_T3}")
        a(f"s_lshl_b32 s{S_T0}, s{S_X}, 3")
        a(f"v_lshlrev_b32 v39, 8, v0")
        a(f"v_add_u32 v39, s{S_T0}, v39")
        self.vm(f"buffer_atomic_add_x2 v[66:67], v39, {srd(SRD_DBG)}, 0 offen sc1")
        self.phase_q(first=True)
        self.stamp(1)
        self.wait_tag("W")
        for o in range(8):
            kb, nt = divmod(o, 2)
            off = SLOT_R1 * 1024 + kb * 2048 + nt * 32
            a(f"ds_read_b64_tr_b16 v[{V_R1+4*o}:{V_R1+4*o+1}], v255 offset:{off}")
            a(f"ds_read_b64_tr_b16 v[{V_R1+4*o+2}:{V_R1+4*o+3}], v255 offset:{off + 256}")
        l1 = a.newlabel("Lr2"); l2 = a.newlabel("Lr2e")
        a(f"s_cmp_ge_u32 s{S_J}, 18")
        a(f"s_cbranch_scc1 {l1}")
        for o in range(4):
            kb, nt = divmod(o, 2)
            off = SLOT_R2 * 1024 + kb * 2048 + nt * 32
            a(f"ds_read_b64_tr_b16 v[{V_R2+4*o}:{V_R2+4*o+1}], v255 offset:{off}")
            a(f"ds_read_b64_tr_b16 v[{V_R2+4*o+2}:{V_R2+4*o+3}], v255 offset:{off + 256}")
        a(f"s_branch {l2}")
        a.label(l1)
        for m in range(5):
            a(f"ds_read_b64_tr_b16 v[{V_R2+4*m}:{V_R2+4*m+1}], v254 offset:{(SLOT_R2+m)*1024}")
            a(f"ds_read_b64_tr_b16 v[{V_R2+4*m+2}:{V_R2+4*m+3}], v254 offset:{(SLOT_R2+m)*1024 + 128}")
        a.label(l2)
        a("s_waitcnt lgkmcnt(0)")
        self.done.add("WTS")
        a("v_lshlrev_b32 v40, 2, v1")
        self.addr_qget(41, 42)
        LAG = 20
        issued_v = lambda u: f"V{u}" in self.pos
        nextq = 0
        flags_issued = False
        while self.stream:
            while nextq < 8 and issued_v(4 * nextq + 3) and (self.nvm - self.pos[f"V{4*nextq+3}"] >= LAG or
                    (len(self.stream) <= 32 - 4 * nextq)):
                self.tr_halfblock(nextq); nextq += 1
            self.S()
            if not flags_issued and "K40" in self.pos:
                self.vm(f"buffer_load_dword v44, v40, {srd(SRD_DBG)}, 0 offen sc1", "FLG")
                flags_issued = True
            if "K63" in self.pos and "QP" not in self.pos:
                self.wait_tag("FLG")
                self.flags_check(44)
                for c in range(4):
                    self.vm(f"buffer_load_dwordx4 v[{16+4*c}:{19+4*c}], v41, {srd(SRD_MB)}, s{S_IT} offen offset:{64*c} sc1", "QP" if c == 3 else None)
        assert nextq == 8
        self.wait_tag("QP")
        nV_after = 0
        self.check_valid(list(range(16, 32)), 42)
        a(f"s_cmp_eq_u32 s{S_OK}, 0")
        a("s_cbranch_scc1 L_slow")
        a("s_cbranch_vccz L_att")
        a.label("L_slow")
        a(f"s_mov_b32 s{S_CNT}, 0")
        a.label("L_slowf")
        a(f"buffer_load_dword v44, v40, {srd(SRD_DBG)}, 0 offen sc1")
        a(f"s_add_u32 s{S_CNT}, s{S_CNT}, 1")
        a(f"s_cmp_gt_u32 s{S_CNT}, {POLL_MAX}")
        a("s_cbranch_scc1 L_abort")
        a("s_waitcnt vmcnt(0)")
        self.flags_check(44)
        a(f"s_cmp_eq_u32 s{S_OK}, 0")
        a("s_cbranch_scc1 L_slowf")
        a.label("L_qpoll")
        self.addr_qget(41, 42)
        self.poll([(4, 16 + 4 * c, 41, S_IT, 64 * c) for c in range(4)], 42)
        self.stamp(10)
        a.label("L_att")
        self.phase_att(nV_after)
        self.stamp(3)
        a(f"s_cmp_ge_u32 s{S_J}, 20")
        a("s_cbranch_scc1 L_noA")
        self.phase_wo()
        a(f"s_cmp_lg_u32 s{S_W}, 0")
        a("s_cbranch_scc1 L_noA")
        self.phase_reduce("A")
        a.label("L_noA")
        a(f"s_cmp_lt_u32 s{S_J}, 18")
        a("s_cbranch_scc1 L_noW1")
        self.phase_w1()
        a.label("L_noW1")
        self.calc_p2(S_O3)
        a(f"s_cmp_lt_u32 s{S_J}, 8")
        a("s_cbranch_scc1 L_w2b")
        a(f"s_cmp_lt_u32 s{S_J}, 20")
        a("s_cbranch_scc1 L_noW2")
        self.phase_w2(V_R1, S_O3)
        a("s_branch L_noW2")
        a.label("L_w2b")
        self.phase_w2(V_R2, S_O3)
        a.label("L_noW2")
        a(f"s_cmp_ge_u32 s{S_J}, 20")
        a("s_cbranch_scc1 L_noB")
        a(f"s_cmp_lg_u32 s{S_W}, 0")
        a("s_cbranch_scc1 L_noB")
        self.phase_reduce("B")
        a.label("L_noB")
        a(f"s_cmp_eq_u32 s{S_ITN}, 1")
        a("s_cbranch_scc1 L_fin")
        a(f"s_mov_b32 s{S_ITN}, 1")
        a(f"s_mov_b32 s{S_IT}, {MB_IT}")
        if self.stamps:
            self.dump_stamps(0)
        self.phase_q(first=False)
        a("s_branch L_qpoll")
        a.label("L_abort")
        a.label("L_fin")
        if self.stamps:
            self.stamp(11)
            self.dump_stamps(1)
        a("s_waitcnt vmcnt(0)")
        a.label("L_end")
        return a.text()
    def calc_p2(self, sd):
        a = self.a
        a(f"s_add_u32 s{S_T0}, s{S_J}, 12")
        a(f"s_cmp_lt_u32 s{S_J}, 8")
        a(f"s_cselect_b32 s{sd}, s{S_T0}, 0x20000")
        a(f"s_sub_u32 s{S_T0}, s{S_J}, 20")
        a(f"s_cmp_ge_u32 s{S_J}, 20")
        a(f"s_cselect_b32 s{sd}, s{S_T0}, s{sd}")
    def dump_stamps(self, it):
        a = self.a
        a(f"s_add_u32 s{SRD_C}, s{P_WS}, {STAMP_OFF}")
        a(f"s_addc_u32 s{SRD_C+1}, s{P_WS+1}, 0")
        a(f"s_mov_b32 s{SRD_C+2}, 0x100000")
        a(f"s_mov_b32 s{SRD_C+3}, 0x20000")
        a(f"s_lshl_b32 s{S_T0}, s2, 2")
        a(f"s_add_u32 s{S_T0}, s{S_T0}, s{S_W}")
        a(f"s_lshl_b32 s{S_T0}, s{S_T0}, 7")
        a(f"s_add_u32 s{S_T0}, s{S_T0}, {64*it}")
        a(f"v_lshlrev_b32 v5, 2, v1")
        a(f"v_mov_b32 v2, {OOB}")
        a(f"v_cmp_le_u32 vcc, 16, v1")
        a("s_nop 1")
        a(f"v_cndmask_b32 v5, v5, v2, vcc")
        a(f"buffer_store_dword v7, v5, {srd(SRD_C)}, s{S_T0} offen")

HEADER = open("interleave_layers__sliding_block_cached__mixer_channel_mlp__decode.s.ref").read().split("; @launch")[0]

def make(stamps=False, opts=None):
    g = Gen(stamps, opts)
    body = g.generate()
    return wrap_kernel(NAME, body, 256, 256, LDS_SIZE, vgpr=512, sgpr=102, accum=256, header_comment=HEADER)

if __name__ == "__main__":
    build(make(False), NAME, "main")
    build(make(True), NAME, "main_st")
    build(make(False, {"force_global": True}), NAME, "main_glob")
    import shutil
    shutil.copy("main.s", "interleave_layers__sliding_block_cached__mixer_channel_mlp__decode.s")
    print("ok", os.path.getsize("main.s"))
```
